```python
import torch

def _softmax(x, axis=-1):
    return torch.softmax(x, dim=axis)
def _gelu(x):
    return torch.nn.functional.gelu(x, approximate="tanh")
def _silu(x):
    return torch.nn.functional.silu(x)
def _sigmoid(x):
    return torch.sigmoid(x)
def _layernorm(x, axis=-1, eps=1e-5):
    m = x.mean(dim=axis, keepdim=True)
    v = x.var(dim=axis, keepdim=True, unbiased=False)
    return (x - m) / torch.sqrt(v + eps)
def _scatter_add(tgt, idx, src, axis=0):
    return tgt.clone().index_add_(axis, idx, src)
def _segment_sum(src, seg, n):
    out = torch.zeros((n,) + src.shape[1:], dtype=src.dtype)
    return out.index_add_(0, seg, src)
def _pad(x, pw):
    flat = tuple(v for pair in reversed(pw) for v in pair)
    return torch.nn.functional.pad(x, flat)

kernel_name = 'sequential_preLN__gqa_block_cached__mixer_token_mlp__decode'

def setup_inputs():

    _w = (lambda a: (lambda t: t.to(torch.bfloat16) if t.is_floating_point() else t)(torch.as_tensor(a)))
    def _A_setup():
        B, Sq, D = 2, 1, 640
        Hq, Hkv, Sk, Dh = 32, 32, 8192, 192
        assert Hq % Hkv == 0, (Hq, Hkv)
        return {
            "x": _w((lambda *s: torch.randn(*s, dtype=torch.bfloat16) * 0.05)(B, Sq, D)),
            "k_cache": _w((lambda *s: torch.randn(*s, dtype=torch.bfloat16) * 1.6)(B, Hkv, Sk, Dh)),
            "v_cache": _w((lambda *s: torch.randn(*s, dtype=torch.bfloat16) * 0.8)(B, Hkv, Sk, Dh)),
            "wq": _w((lambda *s: torch.randn(*s, dtype=torch.bfloat16) * 1.6)(D, Hq * Dh) * (D ** -0.5)),
            "wo": _w((lambda *s: torch.randn(*s, dtype=torch.bfloat16) * 0.8)(Hq * Dh, D) * ((Hq * Dh) ** -0.5)),
        }
    _A_in = _A_setup()

    def _B_setup():
        B, S, D, F = 2, 1, 640, 1536
        return {
            "x": _w((lambda *s: torch.randn(*s, dtype=torch.bfloat16) * 0.05)(B, S, D)),
            "w1": _w((lambda *s: torch.randn(*s, dtype=torch.bfloat16) * 1.6)(S, F) * (S ** -0.5)),
            "b1": _w((lambda *s: torch.randn(*s, dtype=torch.bfloat16) * 1.6)(F) * 0.02),
            "w2": _w((lambda *s: torch.randn(*s, dtype=torch.bfloat16) * 1.6)(F, S) * (F ** -0.5)),
            "b2": _w((lambda *s: torch.randn(*s, dtype=torch.bfloat16) * 0.8)(S) * 0.02),
        }
    _B_in = _B_setup()

    return {
        "A_x": _A_in["x"],
        "A_k_cache": _A_in["k_cache"],
        "A_v_cache": _A_in["v_cache"],
        "A_wq": _A_in["wq"],
        "A_wo": _A_in["wo"],
        "B_x": _B_in["x"],
        "B_w1": _B_in["w1"],
        "B_b1": _B_in["b1"],
        "B_w2": _B_in["w2"],
        "B_b2": _B_in["b2"],
    }

def reference(A_x, A_k_cache, A_v_cache, A_wq, A_wo, B_x, B_w1, B_b1, B_w2, B_b2):
    def _A_ref(x, k_cache, v_cache, wq, wo):
        B, Sq, D = x.shape
        Hq, Dh = 32, 192
        Hkv = k_cache.shape[1]
        rep = Hq // Hkv
        q = (lambda x, *d: x.permute(*d))((x @ wq).reshape(B, Sq, Hq, Dh), 0, 2, 1, 3)
        k = (lambda x, n, axis: torch.repeat_interleave(x, n, dim=axis))(k_cache, rep, axis=1)
        v = (lambda x, n, axis: torch.repeat_interleave(x, n, dim=axis))(v_cache, rep, axis=1)
        scores = torch.einsum("bhqd,bhkd->bhqk", q, k) * (Dh ** -0.5)
        p = _softmax(scores, axis=-1)
        o = torch.einsum("bhqk,bhkd->bhqd", p, v)
        return (lambda x, *d: x.permute(*d))(o, 0, 2, 1, 3).reshape(B, Sq, Hq * Dh) @ wo

    def _B_ref(x, w1, b1, w2, b2):
        B, S, D = x.shape
        h = _layernorm(x, axis=-1)
        u = torch.einsum("bsd,sf->bdf", h, w1) + b1
        u = _gelu(u)
        y = torch.einsum("bdf,fs->bds", u, w2) + b2
        return (lambda x, *d: x.permute(*d))(y, 0, 2, 1)

    x = A_x
    h = x + _A_ref(_layernorm(x, axis=-1), A_k_cache, A_v_cache, A_wq, A_wo)
    h2 = h + _B_ref(_layernorm(h, axis=-1), B_w1, B_b1, B_w2, B_b2)
    return h2
```

```python
import re, struct

def f32bits(x):
    return struct.unpack("<I", struct.pack("<f", x))[0]

_VREG = re.compile(r"\bv(\d+)\b|\bv\[(\d+):(\d+)\]")
_SREG = re.compile(r"\bs(\d+)\b|\bs\[(\d+):(\d+)\]|\bvcc\b")

TRANS = ("v_exp_f32", "v_log_f32", "v_rcp_f32", "v_rsq_f32", "v_sqrt_f32", "v_sin_f32", "v_cos_f32")


def vregs(tok):
    out = []
    for m in _VREG.finditer(tok):
        if m.group(1) is not None:
            out.append(int(m.group(1)))
        else:
            out.extend(range(int(m.group(2)), int(m.group(3)) + 1))
    return out


def sregs(tok):
    out = []
    for m in _SREG.finditer(tok):
        if m.group(0) == "vcc":
            out.extend([106, 107])
        elif m.group(1) is not None:
            out.append(int(m.group(1)))
        else:
            out.extend(range(int(m.group(2)), int(m.group(3)) + 1))
    return out


def split_ops(s):
    s = s.split(";")[0].strip()
    parts = s.split(None, 1)
    mn = parts[0]
    if len(parts) == 1:
        return mn, [], ""
    rest = parts[1]
    ops = []
    depth = 0
    cur = ""
    for ch in rest:
        if ch == "[":
            depth += 1
        if ch == "]":
            depth -= 1
        if ch == "," and depth == 0:
            ops.append(cur.strip())
            cur = ""
        else:
            cur += ch
    ops.append(cur.strip())
    last = ops[-1].split(None, 1)
    mods = ""
    if len(last) == 2:
        ops[-1] = last[0]
        mods = last[1]
    return mn, ops, mods


def pad_hazards(lines):
    out = []
    t = 0
    vw = {}
    sw = {}
    st = {}
    m0t = -100
    for ln in lines:
        s = ln.strip()
        if not s or s.startswith(";") or s.startswith(".") or s.endswith(":"):
            out.append(ln)
            continue
        mn, ops, mods = split_ops(s)
        need = 0

        def req(tp, ws):
            nonlocal need
            need = max(need, tp + 1 + ws)

        is_valu = mn.startswith("v_")
        is_vmem = mn.startswith(("buffer_", "global_", "flat_"))
        is_ds = mn.startswith("ds_")
        is_dpp = is_valu and ("_dpp" in mn)
        is_perm = mn.startswith("v_permlane")
        is_rl = mn.startswith(("v_readlane", "v_readfirstlane"))
        is_dot = mn.startswith("v_dot")
        base = mn.replace("_e32", "").replace("_e64", "").replace("_dpp", "")
        is_trans = base in TRANS
        wr_v, rd_v, wr_s, rd_s = [], [], [], []
        if is_valu:
            if mn.startswith("v_cmp"):
                wr_s = sregs(ops[0]); srcs = ops[1:]
            elif is_rl:
                wr_s = sregs(ops[0]); srcs = ops[1:]
            elif is_perm:
                wr_v = vregs(ops[0]) + vregs(ops[1]); srcs = ops
            elif base in ("v_add_co_u32", "v_addc_co_u32", "v_sub_co_u32", "v_div_scale_f32", "v_mad_u64_u32"):
                wr_v = vregs(ops[0]); wr_s = sregs(ops[1]); srcs = ops[2:]
            else:
                wr_v = vregs(ops[0]); srcs = ops[1:]
                if base in ("v_fmac_f32", "v_dot2c_f32_bf16", "v_writelane_b32") or is_dpp:
                    srcs = srcs + [ops[0]]
            for o in srcs:
                rd_v += vregs(o); rd_s += sregs(o)
            if base == "v_cndmask_b32" and len(ops) == 3:
                rd_s += [106, 107]
            if base == "v_div_fmas_f32":
                rd_s += [106, 107]
        elif is_vmem:
            st_like = ("store" in mn) or ("atomic" in mn)
            for i, o in enumerate(ops):
                if i == 0 and not st_like and " lds" not in (" " + mods):
                    wr_v += vregs(o)
                else:
                    rd_v += vregs(o)
                rd_s += sregs(o)
        elif is_ds:
            if mn.startswith(("ds_read", "ds_swizzle", "ds_bpermute", "ds_permute")) or "_rtn" in mn:
                wr_v = vregs(ops[0])
                for o in ops[1:]:
                    rd_v += vregs(o)
            else:
                for o in ops:
                    rd_v += vregs(o)
        for r in rd_v:
            if r in vw:
                tp, kind, pm = vw[r]
                if kind == "mem":
                    continue
                if is_dpp or is_perm:
                    req(tp, 2)
                if is_rl:
                    req(tp, 1)
                if kind == "trans" and not is_trans:
                    req(tp, 1)
                if kind == "dot":
                    same = is_dot and pm == base
                    if same and r in wr_v and r not in sum((vregs(o) for o in ops[1:3]), []):
                        pass
                    else:
                        req(tp, 3)
        for r in wr_v:
            if r in vw:
                tp, kind, pm = vw[r]
                if kind == "dot" and not (is_dot and pm == base):
                    req(tp, 3)
            if r in st:
                req(st[r], 2)
        for r in rd_s:
            if r in sw:
                if is_valu:
                    req(sw[r], 4 if (is_rl or base == "v_writelane_b32" or base == "v_div_fmas_f32") else 2)
                elif is_vmem:
                    req(sw[r], 5)
        if not (is_valu or is_vmem or is_ds):
            for o in ops:
                for r in sregs(o):
                    if r in sw:
                        req(sw[r], 1)
        if is_vmem and " lds" in (" " + mods):
            req(m0t, 1)
        if need > t:
            n = need - t
            while n > 0:
                k = min(n, 16)
                out.append("    s_nop %d" % (k - 1))
                n -= k
            t = need
        out.append(ln)
        if mn == "s_nop":
            t += int(ops[0], 0) + 1
            continue
        kind = "mem" if (is_vmem or is_ds) else ("trans" if is_trans else ("dot" if is_dot else "valu"))
        for r in wr_v:
            vw[r] = (t, kind, base)
        for r in wr_s:
            sw[r] = t
        if not is_valu and ops and not is_vmem and not is_ds and mn.startswith("s_") and not mn.startswith(("s_cmp", "s_cbranch", "s_branch", "s_waitcnt", "s_barrier", "s_sleep", "s_setprio", "s_endpgm")):
            for r in sregs(ops[0]):
                sw.pop(r, None)
            if ops[0] == "m0":
                m0t = t
        if is_vmem and ("store_dwordx4" in mn or "store_dwordx3" in mn):
            for r in vregs(ops[0] if mn.startswith("buffer_") else ops[1]):
                st[r] = t
        t += 1
    return out


class E:
    def __init__(self):
        self.L = []
        self.q = []

    def __call__(self, s):
        self.L.append("    " + s)

    def raw(self, s):
        self.L.append(s)

    def label(self, n):
        self.L.append(n + ":")

    def c(self, s):
        self.L.append("    ; " + s)

    def vm(self, s, tag, optional=False):
        self.L.append("    " + s)
        self.q.append((tag, optional))

    def wait_vm(self, tags, extra=""):
        if isinstance(tags, str):
            tags = [tags]
        last = -1
        for i, (tg, opt) in enumerate(self.q):
            if tg in tags:
                last = i
        if last < 0:
            if extra:
                self("s_waitcnt " + extra)
            return
        n = sum(1 for (tg, opt) in self.q[last + 1:] if not opt)
        assert n <= 63, n
        self("s_waitcnt vmcnt(%d) %s" % (n, extra))
        self.q = self.q[last + 1:]

    def wait_all(self, extra=""):
        self("s_waitcnt vmcnt(0) %s" % extra)
        self.q = []

    def fence(self):
        self("s_nop 4")

    def text(self):
        return "\n".join(pad_hazards(self.L)) + "\n"
```

```python
import sys, math
sys.path.insert(0, "dev")
from emit import E, f32bits

BASE = "sequential_preLN__gqa_block_cached__mixer_token_mlp__decode"
HDR = open("cdna_kernels/%s.s.ref" % BASE).read().split("; Override launch geometry")[0]

LOG2E = 1.4426950408889634
SCALE = f32bits(192 ** -0.5)
KV_BYTES = 201326592
W_BYTES = 7864320
P1_OFF = 0
P2_OFF = 262144
WS_USED = 1 << 20

S_MASKHI = 14
S_SELLO = 12
S_SELHI = 13


def allreduce(e, v, t, op="add"):
    o = "v_%s_f32" % op
    for m in ("quad_perm:[1,0,3,2]", "quad_perm:[2,3,0,1]", "row_half_mirror", "row_mirror"):
        e(f"{o}_dpp v{v}, v{v}, v{v} {m} row_mask:0xf bank_mask:0xf")
    e(f"v_mov_b32 v{t}, v{v}")
    e(f"v_permlane16_swap_b32 v{v}, v{t}")
    e(f"{o} v{v}, v{v}, v{t}")
    e(f"v_mov_b32 v{t}, v{v}")
    e(f"v_permlane32_swap_b32 v{v}, v{t}")
    e(f"{o} v{v}, v{v}, v{t}")


def round2(e, a, b, t):
    e(f"v_cvt_pk_bf16_f32 v{t}, v{a}, v{b}")
    e(f"v_lshlrev_b32 v{a}, 16, v{t}")
    e(f"v_and_b32 v{b}, s{S_MASKHI}, v{t}")


def round1(e, a, t):
    e(f"v_cvt_pk_bf16_f32 v{t}, v{a}, v{a}")
    e(f"v_lshlrev_b32 v{a}, 16, v{t}")


def ln_stats(e, vals, vm, vsd, vr, t0, t1):
    e(f"v_add_f32 v{vm}, v{vals[0]}, v{vals[1]}")
    for v in vals[2:]:
        e(f"v_add_f32 v{vm}, v{vm}, v{v}")
    allreduce(e, vm, t0)
    e(f"v_mul_f32 v{vm}, 0x{f32bits(1.0 / 640):08x}, v{vm}")
    e(f"v_sub_f32 v{t0}, v{vals[0]}, v{vm}")
    e(f"v_mul_f32 v{vsd}, v{t0}, v{t0}")
    for v in vals[1:]:
        e(f"v_sub_f32 v{t0}, v{v}, v{vm}")
        e(f"v_fmac_f32 v{vsd}, v{t0}, v{t0}")
    allreduce(e, vsd, t0)
    e(f"v_mul_f32 v{vsd}, 0x{f32bits(1.0 / 640):08x}, v{vsd}")
    round2(e, vm, vsd, t0)
    e(f"v_add_f32 v{vsd}, 0x{f32bits(1e-5):08x}, v{vsd}")
    round1(e, vsd, t0)
    e(f"v_sqrt_f32 v{vsd}, v{vsd}")
    round1(e, vsd, t0)
    e(f"v_rcp_f32 v{vr}, v{vsd}")


def ln_apply2(e, a, b, vm, vsd, vr, t0, t1, dst_packed=None):
    e(f"v_sub_f32 v{a}, v{a}, v{vm}")
    e(f"v_sub_f32 v{b}, v{b}, v{vm}")
    round2(e, a, b, t0)
    for x, t in ((a, t0), (b, t1)):
        e(f"v_mul_f32 v{t}, v{x}, v{vr}")
        e(f"v_fma_f32 v{x}, -v{t}, v{vsd}, v{x}")
        e(f"v_fma_f32 v{x}, v{x}, v{vr}, v{t}")
    if dst_packed is not None:
        e(f"v_cvt_pk_bf16_f32 v{dst_packed}, v{a}, v{b}")
    else:
        round2(e, a, b, t0)


def reduce_scatter8(e, acc, ni, outs):
    for i in range(ni):
        for el in range(4):
            a, b = acc[8 * i + el], acc[8 * i + el + 4]
            e(f"v_permlane32_swap_b32 v{a}, v{b}")
    for i in range(ni):
        for el in range(4):
            a, b = acc[8 * i + el], acc[8 * i + el + 4]
            e(f"v_add_f32 v{a}, v{a}, v{b}")
    for i in range(ni):
        for el in range(2):
            a, b = acc[8 * i + el], acc[8 * i + el + 2]
            e(f"v_permlane16_swap_b32 v{a}, v{b}")
    for i in range(ni):
        for el in range(2):
            a, b = acc[8 * i + el], acc[8 * i + el + 2]
            e(f"v_add_f32 v{a}, v{a}, v{b}")
    for i in range(ni):
        a, b = acc[8 * i], acc[8 * i + 1]
        e(f"v_add_f32_dpp v{outs[i]}, v{a}, v{a} row_ror:8 row_mask:0xf bank_mask:0x3")
        e(f"v_add_f32_dpp v{outs[i]}, v{b}, v{b} row_ror:8 row_mask:0xf bank_mask:0xc")


def srd(e, d, lo, nbytes):
    e(f"s_mov_b32 s{d}, s{lo}")
    e(f"s_mov_b32 s{d + 1}, s{lo + 1}")
    e(f"s_mov_b32 s{d + 2}, 0x{nbytes:x}")
    e(f"s_mov_b32 s{d + 3}, 0x20000")


def kernarg_loads(e):
    e("s_load_dwordx16 s[16:31], s[0:1], 0")
    e("s_load_dwordx8 s[32:39], s[0:1], 64")
    e("s_load_dwordx2 s[40:41], s[0:1], 96")


def consts(e):
    e(f"s_mov_b32 s{S_MASKHI}, 0xffff0000")
    e(f"s_mov_b32 s{S_SELLO}, 0x05040100")
    e(f"s_mov_b32 s{S_SELHI}, 0x07060302")


def kernel_begin(e, name):
    e.raw(".globl " + name)
    e.raw(".p2align 8")
    e.raw(".type %s,@function" % name)
    e.label(name)


def descriptor(name, nv, ns):
    return "\n".join([
        ".p2align 6", ".amdhsa_kernel " + name,
        "  .amdhsa_next_free_vgpr %d" % nv, "  .amdhsa_next_free_sgpr %d" % ns,
        "  .amdhsa_accum_offset %d" % ((nv + 3) // 4 * 4), "  .amdhsa_group_segment_fixed_size 0",
        "  .amdhsa_kernarg_size 104", "  .amdhsa_user_sgpr_count 2", "  .amdhsa_user_sgpr_kernarg_segment_ptr 1",
        "  .amdhsa_system_sgpr_workgroup_id_x 1", "  .amdhsa_float_denorm_mode_32 3", ".end_amdhsa_kernel"]) + "\n"


LDS_PART = 0
LDS_QBF = 6144
LDS_ML = 6528
LDS_A_SIZE = 6656

RS = 6
RING0 = 56
ACC = list(range(32, 56))
QF = list(range(20, 32))
SC = list(range(16, 20))
V_LANE, V_KOFF, V_WOFF, V_SCAT = 1, 2, 3, 4
T = list(range(5, 16))
S_LM = 72


def gen_attn(e, name, wq_flags="nt", kv_flags="nt"):
    kernel_begin(e, name)
    e("s_cmp_ge_u32 s2, 256")
    e(f"s_cbranch_scc1 {name}_done")
    kernarg_loads(e)
    e(f"v_and_b32 v{V_LANE}, 63, v0")
    e("v_lshrrev_b32 v5, 6, v0")
    e(f"v_lshrrev_b32 v6, 3, v{V_LANE}")
    e(f"v_and_b32 v7, 7, v{V_LANE}")
    e("v_readfirstlane_b32 s3, v5")
    e("v_lshlrev_b32 v8, 4, v7")
    e(f"v_mul_u32_u24 v{V_KOFF}, 384, v6")
    e(f"v_add_u32 v{V_KOFF}, v{V_KOFF}, v8")
    e(f"v_mul_u32_u24 v{V_WOFF}, 24576, v6")
    e(f"v_add_u32 v{V_WOFF}, v{V_WOFF}, v8")
    e(f"v_lshl_add_u32 v{V_SCAT}, v7, 3, v6")
    e(f"v_lshlrev_b32 v{V_SCAT}, 2, v{V_SCAT}")
    e("s_mul_i32 s4, s3, 768")
    e(f"v_add_u32 v{V_SCAT}, s4, v{V_SCAT}")
    e(f"v_lshlrev_b32 v9, 2, v{V_LANE}")
    e("v_lshlrev_b32 v10, 2, v6")
    for c in range(8):
        e(f"v_cmp_eq_u32 s[{S_LM + 2 * c}:{S_LM + 2 * c + 1}], {c}, v7")
    consts(e)
    e("s_and_b32 s4, s2, 31")
    e("s_lshr_b32 s5, s2, 7")
    e("s_bfe_u32 s6, s2, 0x20005")
    e("s_lshl_b32 s7, s5, 5")
    e("s_add_u32 s7, s7, s4")
    e("s_mul_i32 s8, s7, 3145728")
    e("s_mul_i32 s9, s6, 786432")
    e("s_add_u32 s8, s8, s9")
    e("s_mul_i32 s9, s3, 98304")
    e("s_add_u32 s8, s8, s9")
    e("s_mul_i32 s9, s3, 983040")
    e("s_mul_i32 s10, s4, 384")
    e("s_add_u32 s9, s9, s10")
    e("s_mul_i32 s10, s5, 1280")
    e("s_mul_i32 s11, s3, 160")
    e("s_add_u32 s11, s11, s10")
    e("s_waitcnt lgkmcnt(0)")
    srd(e, 44, 18, KV_BYTES)
    srd(e, 48, 20, KV_BYTES)
    srd(e, 52, 22, W_BYTES)
    srd(e, 56, 16, 2560)
    srd(e, 60, 40, WS_USED)
    XA = ACC[0:5]
    XP = QF[0:5]
    for i in range(5):
        e.vm(f"buffer_load_dword v{XA[i]}, v9, s[56:59], s10 offen offset:{256 * i}", "x")
    for u in range(5):
        e.vm(f"buffer_load_dword v{XP[u]}, v10, s[56:59], s11 offen offset:{32 * u}", "x")

    items = [("W", i) for i in range(10)] + [("K", i) for i in range(32)] + [("V", i) for i in range(32)]

    def issue(n):
        if n >= len(items):
            return
        kind, i = items[n]
        r = RING0 + (n % RS) * 12
        if kind == "W":
            u, ev = i // 2, i % 2
            e(f"s_add_u32 s15, s9, {(16 * u + ev) * 12288}")
            for k in range(3):
                e.vm(f"buffer_load_dwordx4 v[{r + 4 * k}:{r + 4 * k + 3}], v{V_WOFF}, s[52:55], s15 offen offset:{128 * k} {wq_flags}", f"it{n}")
        else:
            sr = 44 if kind == "K" else 48
            e(f"s_add_u32 s15, s8, {i * 3072}")
            for k in range(3):
                e.vm(f"buffer_load_dwordx4 v[{r + 4 * k}:{r + 4 * k + 3}], v{V_KOFF}, s[{sr}:{sr + 3}], s15 offen offset:{128 * k} {kv_flags}", f"it{n}")

    for n in range(RS):
        issue(n)
    e.wait_vm("x")
    vals = ACC[5:15]
    for i in range(5):
        e(f"v_lshlrev_b32 v{vals[2 * i]}, 16, v{XA[i]}")
        e(f"v_and_b32 v{vals[2 * i + 1]}, s{S_MASKHI}, v{XA[i]}")
    vm, vsd, vr = ACC[16], ACC[17], ACC[18]
    ln_stats(e, vals, vm, vsd, vr, T[0], T[1])
    for u in range(5):
        a, b = ACC[20], ACC[21]
        e(f"v_lshlrev_b32 v{a}, 16, v{XP[u]}")
        e(f"v_and_b32 v{b}, s{S_MASKHI}, v{XP[u]}")
        ln_apply2(e, a, b, vm, vsd, vr, T[0], T[1], dst_packed=XP[u])
    for a in ACC:
        e(f"v_mov_b32 v{a}, 0")
    for u in range(5):
        n0, n1 = 2 * u, 2 * u + 1
        e.wait_vm([f"it{n0}", f"it{n1}"])
        r0, r1 = RING0 + (n0 % RS) * 12, RING0 + (n1 % RS) * 12
        for j in range(12):
            i, k = j // 4, j % 4
            tl, th = T[(2 * j) % 8], T[(2 * j + 1) % 8]
            e(f"v_perm_b32 v{tl}, v{r1 + j}, v{r0 + j}, s{S_SELLO}")
            e(f"v_perm_b32 v{th}, v{r1 + j}, v{r0 + j}, s{S_SELHI}")
            e(f"v_dot2c_f32_bf16 v{ACC[8 * i + 2 * k]}, v{tl}, v{XP[u]}")
            e(f"v_dot2c_f32_bf16 v{ACC[8 * i + 2 * k + 1]}, v{th}, v{XP[u]}")
        issue(n0 + RS)
        issue(n1 + RS)
    reduce_scatter8(e, ACC, 3, T[0:3])
    for i in range(3):
        e(f"ds_write_b32 v{V_SCAT}, v{T[i]} offset:{LDS_PART + 256 * i}")
    e("s_waitcnt lgkmcnt(0)")
    e("s_barrier")
    e("s_cmp_ge_u32 s3, 3")
    e(f"s_cbranch_scc1 {name}_q1")
    e("v_lshlrev_b32 v5, 2, v0")
    for w in range(8):
        e(f"ds_read_b32 v{ACC[w]}, v5 offset:{LDS_PART + 768 * w}")
    e("s_waitcnt lgkmcnt(0)")
    for w in range(1, 8):
        e(f"v_add_f32 v{ACC[0]}, v{ACC[0]}, v{ACC[w]}")
    e(f"v_cvt_pk_bf16_f32 v6, v{ACC[0]}, v{ACC[0]}")
    e("v_lshlrev_b32 v5, 1, v0")
    e(f"ds_write_b16 v5, v6 offset:{LDS_QBF}")
    e("s_waitcnt lgkmcnt(0)")
    e.label(f"{name}_q1")
    e("s_barrier")
    e(f"v_and_b32 v5, 7, v{V_LANE}")
    e("v_lshlrev_b32 v5, 4, v5")
    for i in range(3):
        e(f"ds_read_b128 v[{QF[4 * i]}:{QF[4 * i] + 3}], v5 offset:{LDS_QBF + 128 * i}")
    for a in ACC:
        e(f"v_mov_b32 v{a}, 0")
    e("s_waitcnt lgkmcnt(0)")
    for k in range(32):
        n = 10 + k
        r = RING0 + (n % RS) * 12
        e.wait_vm(f"it{n}")
        d = T[0:3]
        for i in range(3):
            e(f"v_mov_b32 v{d[i]}, 0")
        for kk in range(4):
            for i in range(3):
                e(f"v_dot2c_f32_bf16 v{d[i]}, v{r + 4 * i + kk}, v{QF[4 * i + kk]}")
        issue(n + RS)
        e(f"v_add_f32 v{d[0]}, v{d[0]}, v{d[1]}")
        e(f"v_add_f32 v{d[0]}, v{d[0]}, v{d[2]}")
        for m in ("quad_perm:[1,0,3,2]", "quad_perm:[2,3,0,1]", "row_half_mirror"):
            e(f"v_add_f32_dpp v{d[0]}, v{d[0]}, v{d[0]} {m} row_mask:0xf bank_mask:0xf")
        c = k % 8
        e(f"v_cndmask_b32_e64 v{SC[k // 8]}, v{SC[k // 8]}, v{d[0]}, s[{S_LM + 2 * c}:{S_LM + 2 * c + 1}]")
    round2(e, SC[0], SC[1], T[0])
    round2(e, SC[2], SC[3], T[1])
    for s in SC:
        e(f"v_mul_f32 v{s}, 0x{SCALE:08x}, v{s}")
    round2(e, SC[0], SC[1], T[0])
    round2(e, SC[2], SC[3], T[1])
    VM, VL = QF[0], QF[1]
    e(f"v_max_f32 v{VM}, v{SC[0]}, v{SC[1]}")
    e(f"v_max3_f32 v{VM}, v{VM}, v{SC[2]}, v{SC[3]}")
    allreduce(e, VM, T[0], "max")
    for s in SC:
        e(f"v_sub_f32 v{s}, v{s}, v{VM}")
        e(f"v_mul_f32 v{s}, 0x{f32bits(LOG2E):08x}, v{s}")
        e(f"v_exp_f32 v{s}, v{s}")
    e(f"v_add_f32 v{VL}, v{SC[0]}, v{SC[1]}")
    e(f"v_add_f32 v{VL}, v{VL}, v{SC[2]}")
    e(f"v_add_f32 v{VL}, v{VL}, v{SC[3]}")
    allreduce(e, VL, T[0])
    for k in range(32):
        n = 42 + k
        r = RING0 + (n % RS) * 12
        c = k % 8
        pb = T[8 + (k % 2)]
        e(f"v_mov_b32_dpp v{pb}, v{SC[k // 8]} row_newbcast:{c} row_mask:0xf bank_mask:0x3")
        e(f"v_mov_b32_dpp v{pb}, v{SC[k // 8]} row_newbcast:{8 + c} row_mask:0xf bank_mask:0xc")
        e.wait_vm(f"it{n}")
        for j0 in range(0, 12, 2):
            tt = T[(j0 * 2) % 8:(j0 * 2) % 8 + 4]
            for jj in range(2):
                e(f"v_lshlrev_b32 v{tt[2 * jj]}, 16, v{r + j0 + jj}")
                e(f"v_and_b32 v{tt[2 * jj + 1]}, s{S_MASKHI}, v{r + j0 + jj}")
            for jj in range(2):
                j = j0 + jj
                i, kk = j // 4, j % 4
                e(f"v_fmac_f32 v{ACC[8 * i + 2 * kk]}, v{pb}, v{tt[2 * jj]}")
                e(f"v_fmac_f32 v{ACC[8 * i + 2 * kk + 1]}, v{pb}, v{tt[2 * jj + 1]}")
        issue(n + RS)
    reduce_scatter8(e, ACC, 3, T[0:3])
    for i in range(3):
        e(f"ds_write_b32 v{V_SCAT}, v{T[i]} offset:{LDS_PART + 256 * i}")
    e("s_lshl_b32 s4, s3, 3")
    e("v_mov_b32 v5, s4")
    e(f"ds_write_b64 v5, v[{VM}:{VL}] offset:{LDS_ML}")
    e("s_waitcnt lgkmcnt(0)")
    e("s_barrier")
    e("s_cmp_ge_u32 s3, 4")
    e(f"s_cbranch_scc1 {name}_done")
    e("v_lshlrev_b32 v5, 2, v0")
    e("v_mov_b32 v6, 0")
    for w in range(8):
        e(f"ds_read_b32 v{ACC[w]}, v5 offset:{LDS_PART + 768 * w}")
    for w in range(4):
        e(f"ds_read_b128 v[{RING0 + 4 * w}:{RING0 + 4 * w + 3}], v6 offset:{LDS_ML + 16 * w}")
    e("s_waitcnt lgkmcnt(0)")
    M = [RING0 + 2 * w for w in range(8)]
    Lw = [RING0 + 2 * w + 1 for w in range(8)]
    e(f"v_max3_f32 v7, v{M[0]}, v{M[1]}, v{M[2]}")
    e(f"v_max3_f32 v7, v7, v{M[3]}, v{M[4]}")
    e(f"v_max3_f32 v7, v7, v{M[5]}, v{M[6]}")
    e(f"v_max_f32 v7, v7, v{M[7]}")
    for w in range(8):
        e(f"v_sub_f32 v{M[w]}, v{M[w]}, v7")
        e(f"v_mul_f32 v{M[w]}, 0x{f32bits(LOG2E):08x}, v{M[w]}")
        e(f"v_exp_f32 v{M[w]}, v{M[w]}")
    e(f"v_mul_f32 v8, v{M[0]}, v{ACC[0]}")
    e(f"v_mul_f32 v9, v{M[0]}, v{Lw[0]}")
    for w in range(1, 8):
        e(f"v_fmac_f32 v8, v{M[w]}, v{ACC[w]}")
        e(f"v_fmac_f32 v9, v{M[w]}, v{Lw[w]}")
    e("v_cmp_eq_u32 vcc, 0xc0, v0")
    e("v_cndmask_b32 v8, v8, v7, vcc")
    e("v_cmp_eq_u32 vcc, 0xc1, v0")
    e("v_cndmask_b32 v8, v8, v9, vcc")
    e("s_lshl_b32 s4, s2, 10")
    e("v_cmp_gt_u32 vcc, 0xc2, v0")
    e("s_and_saveexec_b64 s[6:7], vcc")
    e(f"buffer_store_dword v8, v5, s[60:63], s4 offen offset:{P1_OFF}")
    e.label(f"{name}_done")
    e("s_endpgm")


LDS_OBF = 0
LDS_RED2 = 2048
LDS_B_SIZE = 2048 + 4096


def gen_oproj(e, name, wo_flags="nt"):
    kernel_begin(e, name)
    e("s_cmp_ge_u32 s2, 160")
    e(f"s_cbranch_scc1 {name}_done")
    kernarg_loads(e)
    e("v_and_b32 v1, 63, v0")
    e("v_lshrrev_b32 v5, 6, v0")
    e("v_lshrrev_b32 v6, 3, v1")
    e("v_and_b32 v7, 7, v1")
    e("v_readfirstlane_b32 s3, v5")
    e("v_lshlrev_b32 v8, 4, v7")
    e("v_mul_u32_u24 v2, 2560, v6")
    e("v_add_u32 v2, v2, v8")
    e("v_lshl_add_u32 v4, v7, 3, v6")
    e("v_lshlrev_b32 v4, 2, v4")
    e("v_lshlrev_b32 v3, 4, v1")
    e("v_mov_b32 v9, 0")
    consts(e)
    e("s_mul_i32 s4, s2, 205")
    e("s_lshr_b32 s4, s4, 11")
    e("s_mul_i32 s5, s4, 10")
    e("s_sub_u32 s5, s2, s5")
    e("s_mul_i32 s6, s4, 384")
    e("s_mul_i32 s7, s3, 48")
    e("s_add_u32 s6, s6, s7")
    e("s_mul_i32 s6, s6, 1280")
    e("s_lshl_b32 s7, s5, 7")
    e("s_add_u32 s6, s6, s7")
    e("s_and_b32 s8, s3, 1")
    e("s_lshr_b32 s9, s3, 1")
    e("s_lshl_b32 s10, s4, 1")
    e("s_add_u32 s10, s10, s8")
    e("s_lshl_b32 s11, s9, 7")
    e("s_add_u32 s10, s10, s11")
    e("s_lshl_b32 s10, s10, 10")
    e("s_waitcnt lgkmcnt(0)")
    srd(e, 64, 24, W_BYTES)
    srd(e, 60, 40, WS_USED)
    W = 32
    G = 64
    e("s_cmp_ge_u32 s3, 4")
    e(f"s_cbranch_scc1 {name}_nog")
    for s in range(4):
        e(f"s_add_u32 s11, s10, {s * 32768}")
        e.vm(f"buffer_load_dwordx4 v[{G + 4 * s}:{G + 4 * s + 3}], v3, s[60:63], s11 offen offset:{P1_OFF}", "g", optional=True)
        e.vm(f"buffer_load_dwordx2 v[{80 + 2 * s}:{81 + 2 * s}], v9, s[60:63], s11 offen offset:{P1_OFF + 768}", "g", optional=True)
    e.label(f"{name}_nog")
    for t in range(3):
        for ev in range(2):
            e(f"s_add_u32 s7, s6, {(16 * t + ev) * 1280}")
            r = W + (2 * t + ev) * 4
            e.vm(f"buffer_load_dwordx4 v[{r}:{r + 3}], v2, s[64:67], s7 offen {wo_flags}", "wo")
    e("s_cmp_ge_u32 s3, 4")
    e(f"s_cbranch_scc1 {name}_nog2")
    e.wait_vm("g")
    M = [80 + 2 * s for s in range(4)]
    Ls = [81 + 2 * s for s in range(4)]
    e(f"v_max3_f32 v10, v{M[0]}, v{M[1]}, v{M[2]}")
    e(f"v_max_f32 v10, v10, v{M[3]}")
    for s in range(4):
        e(f"v_sub_f32 v{M[s]}, v{M[s]}, v10")
        e(f"v_mul_f32 v{M[s]}, 0x{f32bits(LOG2E):08x}, v{M[s]}")
        e(f"v_exp_f32 v{M[s]}, v{M[s]}")
    e(f"v_mul_f32 v11, v{M[0]}, v{Ls[0]}")
    for s in range(1, 4):
        e(f"v_fmac_f32 v11, v{M[s]}, v{Ls[s]}")
    e("v_rcp_f32 v12, v11")
    for k in range(4):
        e(f"v_mul_f32 v{16 + k}, v{M[0]}, v{G + k}")
        for s in range(1, 4):
            e(f"v_fmac_f32 v{16 + k}, v{M[s]}, v{G + 4 * s + k}")
        e(f"v_mul_f32 v13, v{16 + k}, v12")
        e(f"v_fma_f32 v{16 + k}, -v13, v11, v{16 + k}")
        e(f"v_fma_f32 v{16 + k}, v{16 + k}, v12, v13")
    e("v_cvt_pk_bf16_f32 v14, v16, v17")
    e("v_cvt_pk_bf16_f32 v15, v18, v19")
    e("s_mul_i32 s11, s3, 384")
    e("v_lshlrev_b32 v13, 3, v1")
    e("v_add_u32 v13, s11, v13")
    e("v_cmp_gt_u32 vcc, 48, v1")
    e("s_and_saveexec_b64 s[8:9], vcc")
    e(f"ds_write_b64 v13, v[14:15] offset:{LDS_OBF}")
    e("s_mov_b64 exec, s[8:9]")
    e("s_waitcnt lgkmcnt(0)")
    e.label(f"{name}_nog2")
    e("s_barrier")
    e("s_mul_i32 s11, s3, 96")
    e("v_lshlrev_b32 v13, 2, v6")
    e("v_add_u32 v13, s11, v13")
    O = 10
    for b in range(2):
        for t in range(3):
            e(f"ds_read_b32 v{O + 3 * b + t}, v13 offset:{LDS_OBF + 768 * b + 32 * t}")
    A2 = list(range(64, 80))
    for a in A2:
        e(f"v_mov_b32 v{a}, 0")
    e.wait_all("lgkmcnt(0)")
    for t in range(3):
        for k in range(4):
            w0, w1 = W + (2 * t) * 4 + k, W + (2 * t + 1) * 4 + k
            tl, th = 16 + (2 * k) % 8, 17 + (2 * k) % 8
            e(f"v_perm_b32 v{tl}, v{w1}, v{w0}, s{S_SELLO}")
            e(f"v_perm_b32 v{th}, v{w1}, v{w0}, s{S_SELHI}")
            for b in range(2):
                e(f"v_dot2c_f32_bf16 v{A2[8 * b + 2 * k]}, v{tl}, v{O + 3 * b + t}")
                e(f"v_dot2c_f32_bf16 v{A2[8 * b + 2 * k + 1]}, v{th}, v{O + 3 * b + t}")
    reduce_scatter8(e, A2, 2, [16, 17])
    e("s_lshl_b32 s11, s3, 9")
    e("v_add_u32 v4, s11, v4")
    for b in range(2):
        e(f"ds_write_b32 v4, v{16 + b} offset:{LDS_RED2 + 256 * b}")
    e("s_waitcnt lgkmcnt(0)")
    e("s_barrier")
    e("s_cmp_ge_u32 s3, 2")
    e(f"s_cbranch_scc1 {name}_done")
    e("v_lshlrev_b32 v5, 2, v0")
    for w in range(8):
        e(f"ds_read_b32 v{16 + w}, v5 offset:{LDS_RED2 + 512 * w}")
    e("s_waitcnt lgkmcnt(0)")
    for w in range(1, 8):
        e(f"v_add_f32 v16, v16, v{16 + w}")
    e("s_lshl_b32 s11, s2, 9")
    e(f"s_add_u32 s11, s11, {P2_OFF}")
    e("buffer_store_dword v16, v5, s[60:63], s11 offen")
    e.label(f"{name}_done")
    e("s_endpgm")


LDS_HS = 0
LDS_H = 20480
LDS_RED3 = 23040
LDS_C_SIZE = 23040 + 256
GC1 = -2.0 * LOG2E * math.sqrt(2.0 / math.pi)
GC2 = GC1 * 0.044715


def gen_final(e, name):
    kernel_begin(e, name)
    e("s_cmp_ge_u32 s2, 256")
    e(f"s_cbranch_scc1 {name}_done")
    kernarg_loads(e)
    e("v_and_b32 v1, 63, v0")
    e("v_lshrrev_b32 v5, 6, v0")
    e("v_lshrrev_b32 v6, 4, v1")
    e("v_and_b32 v7, 15, v1")
    e("v_readfirstlane_b32 s3, v5")
    e("v_lshlrev_b32 v2, 9, v6")
    e("v_lshl_add_u32 v2, v7, 4, v2")
    e("v_lshlrev_b32 v3, 1, v0")
    e("v_lshlrev_b32 v4, 3, v0")
    e("v_mov_b32 v9, 0")
    consts(e)
    e("s_lshr_b32 s4, s2, 7")
    e("s_and_b32 s5, s2, 127")
    e("s_mul_i32 s5, s5, 5")
    e("s_mul_i32 s6, s3, 10240")
    e("s_lshl_b32 s7, s4, 8")
    e("s_add_u32 s6, s6, s7")
    e(f"s_add_u32 s6, s6, {P2_OFF}")
    e("s_mul_i32 s8, s4, 1280")
    e("s_waitcnt lgkmcnt(0)")
    srd(e, 60, 40, WS_USED)
    srd(e, 56, 16, 2560)
    srd(e, 44, 28, 3072)
    srd(e, 48, 30, 3072)
    srd(e, 52, 32, 3072)
    srd(e, 64, 34, 2)
    srd(e, 68, 36, 2560)
    G = 32
    for r in range(2):
        for n in range(3):
            e(f"s_add_u32 s7, s6, {r * 5120 + n * 2048}")
            g = G + (3 * r + n) * 4
            e.vm(f"buffer_load_dwordx4 v[{g}:{g + 3}], v2, s[60:63], s7 offen", "g")
    e.vm("buffer_load_dwordx2 v[10:11], v4, s[56:59], s8 offen", "x")
    W1, B1, W2 = [56, 57, 58], [59, 60, 61], [62, 63, 64]
    for k in range(3):
        e.vm(f"buffer_load_ushort v{W1[k]}, v3, s[44:47], 0 offen offset:{1024 * k}", "w")
        e.vm(f"buffer_load_ushort v{B1[k]}, v3, s[48:51], 0 offen offset:{1024 * k}", "w")
        e.vm(f"buffer_load_ushort v{W2[k]}, v3, s[52:55], 0 offen offset:{1024 * k}", "w")
    e.vm("buffer_load_ushort v65, v9, s[64:67], 0 offen", "w")
    e.wait_vm("g")
    for n in range(3):
        for k in range(4):
            e(f"v_add_f32 v{G + 4 * n + k}, v{G + 4 * n + k}, v{G + 12 + 4 * n + k}")
    e("s_mul_i32 s7, s3, 2560")
    e("v_lshlrev_b32 v5, 4, v1")
    e("v_add_u32 v5, s7, v5")
    e(f"ds_write_b128 v5, v[{G}:{G + 3}] offset:{LDS_HS}")
    e(f"ds_write_b128 v5, v[{G + 4}:{G + 7}] offset:{LDS_HS + 1024}")
    e("v_cmp_gt_u32 vcc, 32, v1")
    e("s_and_saveexec_b64 s[10:11], vcc")
    e(f"ds_write_b128 v5, v[{G + 8}:{G + 11}] offset:{LDS_HS + 2048}")
    e("s_mov_b64 exec, s[10:11]")
    e("s_waitcnt lgkmcnt(0)")
    e("s_barrier")
    e("s_cmp_ge_u32 s3, 3")
    e(f"s_cbranch_scc1 {name}_h1")
    e("v_cmp_gt_u32 vcc, 0xa0, v0")
    e("s_and_saveexec_b64 s[10:11], vcc")
    e("v_lshlrev_b32 v5, 4, v0")
    for w in range(6):
        e(f"ds_read_b128 v[{G + 4 * w}:{G + 4 * w + 3}], v5 offset:{LDS_HS + 2560 * w}")
    for w in range(6, 8):
        e(f"ds_read_b128 v[{12 + 4 * (w - 6)}:{15 + 4 * (w - 6)}], v5 offset:{LDS_HS + 2560 * w}")
    e.wait_vm("x", "lgkmcnt(0)")
    for k in range(4):
        for w in range(1, 6):
            e(f"v_add_f32 v{G + k}, v{G + k}, v{G + 4 * w + k}")
        e(f"v_add_f32 v{G + k}, v{G + k}, v{12 + k}")
        e(f"v_add_f32 v{G + k}, v{G + k}, v{16 + k}")
    round2(e, G, G + 1, 12)
    round2(e, G + 2, G + 3, 12)
    e("v_lshlrev_b32 v12, 16, v10")
    e(f"v_and_b32 v13, s{S_MASKHI}, v10")
    e("v_lshlrev_b32 v14, 16, v11")
    e(f"v_and_b32 v15, s{S_MASKHI}, v11")
    for k in range(4):
        e(f"v_add_f32 v{G + k}, v{G + k}, v{12 + k}")
    round2(e, G, G + 1, 12)
    round2(e, G + 2, G + 3, 12)
    e(f"ds_write_b128 v5, v[{G}:{G + 3}] offset:{LDS_H}")
    e("s_mov_b64 exec, s[10:11]")
    e("s_waitcnt lgkmcnt(0)")
    e.label(f"{name}_h1")
    e("s_barrier")
    e("v_lshlrev_b32 v5, 3, v1")
    H = list(range(32, 42))
    for i in range(5):
        e(f"ds_read_b64 v[{H[2 * i]}:{H[2 * i] + 1}], v5 offset:{LDS_H + 512 * i}")
    e("s_lshl_b32 s7, s5, 2")
    e("v_mov_b32 v6, s7")
    HE = [42, 43, 44, 45, 46]
    YE = [47, 48, 49, 50, 51, 52]
    for el in range(5):
        e(f"ds_read_b32 v{HE[el]}, v6 offset:{LDS_H + 4 * el}")
    e("s_waitcnt lgkmcnt(0)")
    m1, sd1, r1, m2, sd2, r2 = 12, 13, 14, 15, 16, 17
    ln_stats(e, H, m1, sd1, r1, 18, 19)
    for i in range(5):
        ln_apply2(e, H[2 * i], H[2 * i + 1], m1, sd1, r1, 18, 19)
    ln_stats(e, H, m2, sd2, r2, 18, 19)
    for el in range(5):
        e(f"v_mov_b32 v{YE[el]}, v{HE[el]}")
    e(f"v_mov_b32 v{YE[5]}, v{HE[4]}")
    for p in range(3):
        ln_apply2(e, YE[2 * p], YE[2 * p + 1], m1, sd1, r1, 18, 19)
        ln_apply2(e, YE[2 * p], YE[2 * p + 1], m2, sd2, r2, 18, 19)
    e.wait_vm("w")
    for r in W1 + B1 + W2 + [65]:
        e(f"v_lshlrev_b32 v{r}, 16, v{r}")
    e(f"s_mov_b32 s8, 0x{f32bits(GC1):08x}")
    e(f"s_mov_b32 s9, 0x{f32bits(GC2):08x}")
    e("v_mov_b32 v31, s8")
    AC = [66, 67, 68, 69, 70]
    for a in AC:
        e(f"v_mov_b32 v{a}, 0")
    combos = [(el, k) for el in range(5) for k in range(3)]
    combos.append(combos[-1])
    for p in range(8):
        (e0, k0), (e1, k1) = combos[2 * p], combos[2 * p + 1]
        a, b, t0, t1 = 20, 21, 22, 23
        e(f"v_mul_f32 v{a}, v{YE[e0]}, v{W1[k0]}")
        e(f"v_mul_f32 v{b}, v{YE[e1]}, v{W1[k1]}")
        round2(e, a, b, t0)
        e(f"v_add_f32 v{a}, v{a}, v{B1[k0]}")
        e(f"v_add_f32 v{b}, v{b}, v{B1[k1]}")
        round2(e, a, b, t0)
        for x, t in ((a, t0), (b, t1)):
            e(f"v_mul_f32 v{t}, v{x}, v{x}")
            e(f"v_fma_f32 v{t}, v{t}, s9, v31")
            e(f"v_mul_f32 v{t}, v{t}, v{x}")
            e(f"v_exp_f32 v{t}, v{t}")
        for x, t in ((a, t0), (b, t1)):
            e(f"v_add_f32 v{t}, 1.0, v{t}")
            e(f"v_rcp_f32 v{t}, v{t}")
        for x, t in ((a, t0), (b, t1)):
            e(f"v_mul_f32 v{x}, v{x}, v{t}")
        round2(e, a, b, t0)
        e(f"v_fmac_f32 v{AC[e0]}, v{a}, v{W2[k0]}")
        if p < 7:
            e(f"v_fmac_f32 v{AC[e1]}, v{b}, v{W2[k1]}")
    for a in AC:
        allreduce(e, a, 20)
    for el in range(1, 5):
        e(f"v_cmp_eq_u32 vcc, {el}, v1")
        e(f"v_cndmask_b32 v{AC[0]}, v{AC[0]}, v{AC[el]}, vcc")
        e(f"v_cndmask_b32 v{HE[0]}, v{HE[0]}, v{HE[el]}, vcc")
    e("s_lshl_b32 s7, s3, 5")
    e("v_lshlrev_b32 v5, 2, v1")
    e("v_add_u32 v6, s7, v5")
    e("v_cmp_gt_u32 vcc, 5, v1")
    e("s_and_saveexec_b64 s[10:11], vcc")
    e(f"ds_write_b32 v6, v{AC[0]} offset:{LDS_RED3}")
    e("s_waitcnt lgkmcnt(0)")
    e("s_barrier")
    e("s_cmp_ge_u32 s3, 1")
    e(f"s_cbranch_scc1 {name}_done")
    for w in range(8):
        e(f"ds_read_b32 v{20 + w}, v5 offset:{LDS_RED3 + 32 * w}")
    e("s_waitcnt lgkmcnt(0)")
    for w in range(1, 8):
        e(f"v_add_f32 v20, v20, v{20 + w}")
    round1(e, 20, 21)
    e("v_add_f32 v20, v20, v65")
    round1(e, 20, 21)
    e(f"v_add_f32 v20, v20, v{HE[0]}")
    e("v_cvt_pk_bf16_f32 v20, v20, v20")
    e("s_mul_i32 s7, s4, 640")
    e("s_add_u32 s7, s7, s5")
    e("s_lshl_b32 s7, s7, 1")
    e("v_lshlrev_b32 v5, 1, v1")
    e("buffer_store_short v20, v5, s[68:71], s7 offen")
    e.label(f"{name}_done")
    e("s_endpgm")


def build(**kw):
    out = HDR
    out += f"; @launch kernel=attn_kernel grid=(256,1,1) block=(512,1,1) lds={LDS_A_SIZE}\n"
    out += f"; @launch kernel=oproj_kernel grid=(160,1,1) block=(512,1,1) lds={LDS_B_SIZE}\n"
    out += f"; @launch kernel=final_kernel grid=(256,1,1) block=(512,1,1) lds={LDS_C_SIZE}\n"
    out += '.amdgcn_target "amdgcn-amd-amdhsa--gfx950"\n.text\n'
    e = E(); gen_attn(e, "attn_kernel", **kw); out += e.text()
    e = E(); gen_oproj(e, "oproj_kernel"); out += e.text()
    e = E(); gen_final(e, "final_kernel"); out += e.text()
    out += '.section .rodata,"a"\n'
    out += descriptor("attn_kernel", 128, 96)
    out += descriptor("oproj_kernel", 88, 96)
    out += descriptor("final_kernel", 72, 96)
    return out


if __name__ == "__main__":
    dst = sys.argv[1] if len(sys.argv) > 1 else "cdna_kernels/%s.s" % BASE
    open(dst, "w").write(build())
    print("wrote", dst)
```
